```python
import torch

def _softmax(x, axis=-1):
    return torch.softmax(x, dim=axis)
def _gelu(x):
    return torch.nn.functional.gelu(x, approximate="tanh")
def _silu(x):
    return torch.nn.functional.silu(x)
def _sigmoid(x):
    return torch.sigmoid(x)
def _layernorm(x, axis=-1, eps=1e-5):
    m = x.mean(dim=axis, keepdim=True)
    v = x.var(dim=axis, keepdim=True, unbiased=False)
    return (x - m) / torch.sqrt(v + eps)
def _scatter_add(tgt, idx, src, axis=0):
    return tgt.clone().index_add_(axis, idx, src)
def _segment_sum(src, seg, n):
    out = torch.zeros((n,) + src.shape[1:], dtype=src.dtype)
    return out.index_add_(0, seg, src)
def _pad(x, pw):
    flat = tuple(v for pair in reversed(pw) for v in pair)
    return torch.nn.functional.pad(x, flat)

kernel_name = 'standalone__mha_block_cached__near_ridge'

def setup_inputs():

    _w = (lambda a: (lambda t: t.to(torch.bfloat16) if t.is_floating_point() else t)(torch.as_tensor(a)))
    B, Sq, D = 16, 192, 640
    H, Sk, Dh = 32, 512, 192
    return {
        "x": _w((lambda *s: torch.randn(*s, dtype=torch.bfloat16) * 0.8)(B, Sq, D)),
        "k_cache": _w((lambda *s: torch.randn(*s, dtype=torch.bfloat16) * 0.8)(B, H, Sk, Dh)),
        "v_cache": _w((lambda *s: torch.randn(*s, dtype=torch.bfloat16) * 0.05)(B, H, Sk, Dh)),
        "wq": _w((lambda *s: torch.randn(*s, dtype=torch.bfloat16) * 0.8)(D, H * Dh) * (D ** -0.5)),
        "wo": _w((lambda *s: torch.randn(*s, dtype=torch.bfloat16) * 0.05)(H * Dh, D) * ((H * Dh) ** -0.5)),
    }

def reference(x, k_cache, v_cache, wq, wo):
    B, Sq, D = x.shape
    H, Dh = 32, 192
    q = (lambda x, *d: x.permute(*d))((x @ wq).reshape(B, Sq, H, Dh), 0, 2, 1, 3)
    scores = torch.einsum("bhqd,bhkd->bhqk", q, k_cache) * (Dh ** -0.5)
    p = _softmax(scores, axis=-1)
    o = torch.einsum("bhqk,bhkd->bhqd", p, v_cache)
    return (lambda x, *d: x.permute(*d))(o, 0, 2, 1, 3).reshape(B, Sq, H * Dh) @ wo
```

```python
import re

REG_RE = re.compile(r'^(v|a|s)(\d+)$')
RNG_RE = re.compile(r'^(v|a|s)\[(\d+):(\d+)\]$')

def regs_of(op):
    op = op.strip()
    neg = op.lstrip('-')
    if neg.startswith('abs(') or neg.startswith('|'):
        neg = neg.replace('abs(', '').replace(')', '').replace('|', '')
    m = REG_RE.match(neg)
    if m: return [(m.group(1), int(m.group(2)))]
    m = RNG_RE.match(neg)
    if m: return [(m.group(1), i) for i in range(int(m.group(2)), int(m.group(3)) + 1)]
    if neg == 'vcc': return [('s', 106), ('s', 107)]
    if neg == 'm0': return [('s', 124)]
    if neg == 'exec': return [('s', 126), ('s', 127)]
    return []

TRANS = ('v_exp_f32', 'v_log_f32', 'v_rcp_f32', 'v_rsq_f32', 'v_sqrt_f32')

class I:
    __slots__ = ('text', 'mn', 'kind', 'defs', 'uses', 'tag', 'cost', 'ops', 'note')
    def __init__(self, text, tag=None):
        self.text = text
        self.tag = tag
        self.note = None
        t = text.split(';')[0].strip()
        self.defs = []; self.uses = []; self.cost = 4; self.ops = []
        if t.startswith('@need'):
            self.mn = '@need'; self.kind = 'need'; self.cost = 0
            for o in t.split()[1:]: self.uses += regs_of(o)
            return
        if not t or t.endswith(':') or t.startswith('.'):
            self.mn = ''; self.kind = 'label' if t.endswith(':') else 'dir'; self.cost = 0
            return
        parts = t.split(None, 1)
        mn = parts[0]; self.mn = mn
        rest = parts[1] if len(parts) > 1 else ''
        ops = [o.strip() for o in rest.split(',')] if rest else []
        cl = []
        for o in ops:
            cl.append(o.split()[0] if o else o)
        self.ops = cl
        R = lambda k: regs_of(cl[k]) if k < len(cl) else []
        allr = lambda k0: [r for k in range(k0, len(cl)) for r in regs_of(cl[k])]
        if mn.startswith('v_mfma'):
            self.kind = 'mfma'; self.defs = R(0); self.uses = R(1) + R(2) + R(3); self.cost = 8
        elif mn.startswith('ds_read'):
            self.kind = 'ds_read'; self.defs = R(0); self.uses = R(1)
        elif mn.startswith('ds_write'):
            self.kind = 'ds_write'; self.uses = allr(0)
        elif mn.startswith('buffer_load'):
            if re.search(r'\blds\b', rest):
                self.kind = 'dma'; self.uses = allr(0) + [('s', 124)]
            else:
                self.kind = 'vload'; self.defs = R(0); self.uses = allr(1)
        elif mn.startswith('buffer_store'):
            self.kind = 'vstore'; self.uses = allr(0)
        elif mn.startswith('buffer_atomic') or mn.startswith('global_atomic'):
            self.kind = 'vstore'; self.uses = allr(0)
            if re.search(r'\bsc0\b', rest): self.defs = R(0); self.kind = 'vload'
        elif mn.startswith('global_load'):
            self.kind = 'vload'; self.defs = R(0); self.uses = allr(1)
        elif mn.startswith('global_store'):
            self.kind = 'vstore'; self.uses = allr(0)
        elif mn.startswith('v_cmp'):
            self.kind = 'valu'; self.defs = R(0); self.uses = allr(1)
        elif mn.startswith('v_permlane') and 'swap' in mn:
            self.kind = 'permlane'; self.defs = R(0) + R(1); self.uses = R(0) + R(1)
        elif mn.startswith('v_readfirstlane') or mn.startswith('v_readlane'):
            self.kind = 'readlane'; self.defs = R(0); self.uses = allr(1)
        elif mn.startswith('v_'):
            self.kind = 'trans' if mn.replace('_e32', '').replace('_e64', '') in TRANS else 'valu'
            self.defs = R(0); self.uses = allr(1)
            if mn.startswith('v_fmac') or mn.startswith('v_mac') or 'dot2c' in mn: self.uses += R(0)
            if mn.startswith('v_cndmask') and len(cl) == 4 and not regs_of(cl[3]): pass
            if mn.startswith('v_add_co') or mn.startswith('v_addc_co') or mn.startswith('v_sub_co'):
                self.defs = R(0) + R(1); self.uses = allr(2)
            if self.kind == 'trans': self.cost = 8
        elif mn in ('s_waitcnt',):
            self.kind = 'wait'
        elif mn == 's_barrier':
            self.kind = 'barrier'
        elif mn == 's_nop':
            self.kind = 'nop'; self.cost = 4 * (int(cl[0], 0) + 1)
        elif mn.startswith('s_cbranch') or mn in ('s_branch', 's_setpc_b64', 's_call_b64', 's_swappc_b64', 's_endpgm'):
            self.kind = 'branch'
            if mn == 's_call_b64': self.defs = R(0)
            if mn == 's_setpc_b64': self.uses = R(0)
        elif mn.startswith('s_load') or mn.startswith('s_buffer_load') or mn in ('s_memtime', 's_memrealtime'):
            self.kind = 'smem'; self.defs = R(0); self.uses = allr(1)
        elif mn.startswith('s_cmp') or mn.startswith('s_bitcmp'):
            self.kind = 'salu'; self.uses = allr(0)
        elif mn in ('s_setprio', 's_sleep', 's_sethalt'):
            self.kind = 'salu'
        elif mn.startswith('s_'):
            self.kind = 'salu'; self.defs = R(0); self.uses = allr(1)
            if 'saveexec' in mn: self.defs += [('s', 126), ('s', 127)]
        else:
            raise ValueError('unknown instruction: ' + text)
    def states(self):
        if self.kind in ('label', 'dir', 'need'): return 0
        if self.kind == 'nop': return int(self.ops[0], 0) + 1
        return 1
    def __repr__(self): return self.text

def isvec(r): return r[0] in ('v', 'a')
VALU_KINDS = ('valu', 'trans', 'permlane', 'readlane')

def insert_lgkm_waits(prog, verbose=False):
    out = []; pend = []
    for ins in prog:
        if ins.kind == 'wait':
            m = re.search(r'lgkmcnt\((\d+)\)', ins.text)
            if m:
                n = int(m.group(1))
                if len(pend) > n: pend = pend[len(pend) - n:] if n else []
            out.append(ins); continue
        if ins.kind == 'smem':
            pend.append(('smem', set(ins.defs)))
            out.append(ins); continue
        touched = set(ins.uses) | set(ins.defs)
        need = -1
        for k, (kind, d) in enumerate(pend):
            if d and (d & touched):
                need = k
                if kind == 'smem': need = len(pend) - 1
        if need >= 0:
            if any(k == 'smem' for k, _ in pend): n = 0
            else: n = len(pend) - 1 - need
            n = min(n, 15)
            out.append(I('s_waitcnt lgkmcnt(%d)' % n))
            pend = pend[len(pend) - n:] if n else []
        if ins.kind == 'ds_read': pend.append(('ds', set(ins.defs)))
        elif ins.kind == 'ds_write': pend.append(('ds', None))
        if ins.kind != 'need': out.append(ins)
    return out

def insert_vm_waits(prog):
    out = []; pend = []
    for ins in prog:
        if ins.kind == 'wait':
            m = re.search(r'vmcnt\((\d+)\)', ins.text)
            if m:
                n = int(m.group(1))
                if len(pend) > n: pend = pend[len(pend) - n:] if n else []
            out.append(ins); continue
        touched = set(ins.uses) | set(ins.defs)
        need = -1
        for k, d in enumerate(pend):
            if d and (d & touched): need = k
        if need >= 0:
            n = min(len(pend) - 1 - need, 63)
            out.append(I('s_waitcnt vmcnt(%d)' % n))
            pend = pend[len(pend) - n:] if n else []
        if ins.kind == 'vload': pend.append(set(ins.defs))
        elif ins.kind in ('vstore', 'dma'): pend.append(None)
        out.append(ins)
    return out

def required_distance(p, c):
    need = 0
    pd = set(p.defs); pu = set(p.uses); cd = set(c.defs); cu = set(c.uses)
    if p.kind == 'mfma':
        passes4 = '16x16x32' in p.mn
        assert passes4
        D = pd
        if c.kind == 'mfma':
            C = set(regs_of(c.ops[3])); A = set(regs_of(c.ops[1])) | set(regs_of(c.ops[2]))
            if D & A: need = max(need, 8)
            if D & C and D != C: need = max(need, 6)
            if D & cd and D != cd: need = max(need, 8)
            if D & cd and D == cd and not (D & C): need = max(need, 8)
        elif c.kind in VALU_KINDS:
            if D & (cu | cd): need = max(need, 8)
            Cs = set(regs_of(p.ops[3]))
            if Cs & cd: need = max(need, 3)
        elif c.kind in ('ds_read', 'ds_write', 'vload', 'vstore', 'dma'):
            if D & (cu | cd): need = max(need, 8)
    if p.kind in VALU_KINDS:
        vd = {r for r in pd if isvec(r)}; sd = {r for r in pd if r[0] == 's'}
        if c.kind == 'mfma' and vd & cu: need = max(need, 2)
        if c.kind == 'permlane' and vd & cu: need = max(need, 2)
        if c.kind == 'readlane' and vd & cu: need = max(need, 1)
        if p.kind == 'trans' and c.kind in VALU_KINDS + ('ds_write', 'vstore') and vd & cu: need = max(need, 1)
        if 'dpp' in c.text and vd & cu: need = max(need, 2)
        if sd:
            if c.kind in ('vload', 'vstore', 'dma') and sd & cu: need = max(need, 5)
            if c.kind in VALU_KINDS and sd & cu: need = max(need, 2)
            if c.kind == 'readlane' and sd & cu: need = max(need, 4)
            if c.kind == 'salu' and sd & cu: need = max(need, 1)
        if 'op_sel' in p.text and p.mn.startswith('v_cvt') and vd & cu: need = max(need, 1)
    if p.kind == 'salu':
        if ('s', 124) in pd and c.kind == 'dma': need = max(need, 1)
        if (('s', 126) in pd or ('s', 127) in pd) and c.kind == 'mfma': need = max(need, 4)
    if p.kind == 'vstore' and ('x4' in p.mn or 'x3' in p.mn):
        data = set(regs_of(p.ops[0])) if p.mn.startswith('buffer') else set(regs_of(p.ops[1]))
        if c.kind in VALU_KINDS and data & cd: need = max(need, 2)
        elif data & cd: need = max(need, 1)
    if p.kind == 'ds_write' and 'b128' in p.mn:
        data = set(regs_of(p.ops[1]))
        if c.kind in VALU_KINDS and data & cd: need = max(need, 2)
    return need

def pad_hazards(prog, window=12):
    out = []; npad = 0
    for ins in prog:
        if ins.kind in ('label', 'dir'):
            out.append(ins); continue
        dist = 0; need_pad = 0
        for p in reversed(out):
            if p.kind in ('label', 'dir'): continue
            req = required_distance(p, ins)
            if req > dist: need_pad = max(need_pad, req - dist)
            dist += p.states()
            if dist >= window: break
        if need_pad:
            out.append(I('s_nop %d' % (need_pad - 1))); npad += 1
        out.append(ins)
    return out, npad

def merge(mf, fills):
    by = {}
    for k, (pos, it) in enumerate(fills):
        by.setdefault(pos, []).append(it)
    out = []
    def emit(p):
        for it in by.get(p, []):
            if isinstance(it, list): out.extend(it)
            else: out.append(it)
    for p in sorted(x for x in by if x < 0): emit(p)
    for p, m in enumerate(mf):
        out.append(m); emit(p)
    for p in sorted(x for x in by if x >= len(mf)): emit(p)
    return out

class Slots:
    def __init__(self, n, cap=8):
        self.n = n; self.cap = [cap] * n; self.fills = []
    def cost(self, it):
        return sum(x.cost for x in it) if isinstance(it, list) else it.cost
    def put(self, pos, it):
        pos = max(-1, min(pos, self.n - 1))
        if pos >= 0: self.cap[pos] -= self.cost(it)
        self.fills.append((pos, it))
    def spread(self, items, lo, hi):
        n = len(items)
        for k, it in enumerate(items):
            self.put(lo + (k * (hi - lo + 1)) // n, it)
    def flow(self, items, hi, lo=0):
        E = 0
        span = hi - lo + 1
        while True:
            cap = list(self.cap)
            for k in range(E):
                cap[lo + ((2 * k + 1) * span // (2 * E)) % span if E <= span else lo + k % span] += 4
            p = 0; placed = []; ok = True
            for e, it in items:
                c = self.cost(it)
                p = max(p, e)
                while p <= hi and cap[p] < c: p += 1
                if p > hi: ok = False; break
                cap[p] -= c; placed.append((p, it))
            if ok: break
            E += 1
            if E > 24 * span: raise RuntimeError('cannot place')
        for p, it in placed:
            self.cap[p] -= self.cost(it); self.fills.append((p, it))
        return E
```

```python
from ir import I, Slots, merge, insert_lgkm_waits, pad_hazards

SLOT = 24576
voX = [8 + i for i in range(6)]
voW = [14 + i for i in range(6)]
voK = [20 + i for i in range(6)]
voV = [26 + i for i in range(6)]
vOst = 32
vRcp = [33, 34, 35]
negm = lambda qb: 40 + 4 * qb
vL = [52, 53, 54]
vT = [55, 56, 57]
TMP = [58, 59, 60, 61, 62, 63, 38, 39]
P1 = 64
R = 88
S0 = R + 72
P0 = R + 120
vaX = lambda b, ks: 232 + 2 * b + ks
vaK = lambda b, par: 238 + 2 * b + par
vaT = lambda b, d4: 244 + 4 * b + d4
SETS = [144, 168]
XF = lambda qb, ks: 192 + 4 * (2 * qb + ks)
OACC = lambda db, qb: 4 * (3 * db + qb)
QACC = lambda db, qb: R + 4 * ((3 * (db // 2) + qb) * 2 + db % 2)
QF = lambda qb, s: R + 4 * (3 * s + qb)
SREG = lambda kb, qb: S0 + 4 * (3 * kb + qb)
def PREG(par, ks, qb): return (P1 if par else P0) + 4 * (3 * ks + qb)
sX, sW, sK, sV, sO, sTmp = 4, 8, 12, 16, 20, 24
sWave, sWbase, sRet, sHead = 28, 29, 30, 32
sOffA, sOffB, sOoff = 35, 36, 37
sScale = 38
sThr = 40
sWsizeNext = 41
sT0, sT1, sT2, sT3 = 42, 43, 44, 45

vr = lambda b, n=4: 'v[%d:%d]' % (b, b + n - 1)
ar = lambda b, n=4: 'a[%d:%d]' % (b, b + n - 1)
sr = lambda b, n=4: 's[%d:%d]' % (b, b + n - 1)

class Cfg:
    ntKV = True
    ntXW = False
    ntO = ''
    job = True
    stamps = False

def mfma(d, a, b, c):
    return I('v_mfma_f32_16x16x32_bf16 %s, %s, %s, %s' % (d, a, b, c))

def t_reads(pos, db, ks, dst):
    bank, base = pos // 2, (pos % 2) * SLOT
    lo = base + 32 * ks * 384 + (db // 4) * 128
    va = vaT(bank, db % 4)
    return [I('ds_read_b64_tr_b16 %s, v%d offset:%d' % (ar(dst, 2), va, lo)),
            I('ds_read_b64_tr_b16 %s, v%d offset:%d' % (ar(dst + 2, 2), va, lo + 4 * 384))]

def k_read(pos, kb, s, dst):
    bank, base = pos // 2, (pos % 2) * SLOT
    off = base + (32 * (kb // 2) + 4 * (kb % 2)) * 384 + (s // 2) * 128
    return I('ds_read_b128 %s, v%d offset:%d' % (ar(dst), vaK(bank, s % 2), off))

def x_read(pos, qb, ks):
    bank, base = pos // 2, (pos % 2) * SLOT
    return I('ds_read_b128 %s, v%d offset:%d' % (ar(XF(qb, ks)), vaX(bank, ks), base + qb * 2048))

def dma_slot(cfg, typ, idx, pos, ch):
    srd, vo, soff, nt = {
        'X': (sX, voX, idx * 128, cfg.ntXW), 'W': (sW, voW, idx * 786432, cfg.ntXW),
        'K': (sK, voK, idx * SLOT, cfg.ntKV), 'V': (sV, voV, idx * SLOT, cfg.ntKV)}[typ]
    so = sOffA if ch == 0 else sOffB
    fl = ' nt' if nt else ''
    items = []
    ld = lambda i: I('buffer_load_dwordx4 v%d, %s, s%d offen offset:%d%s lds' % (vo[i], sr(srd), so, 1024 * (i % 4), fl), tag=(typ, idx))
    items.append([I('s_add_u32 m0, s%d, %d' % (sWbase, pos * SLOT)), I('s_mov_b32 s%d, %d' % (so, soff))])
    items += [ld(0), ld(1), ld(2), ld(3)]
    items.append(I('s_add_u32 m0, s%d, %d' % (sWbase, pos * SLOT + 4096)))
    items += [ld(4), ld(5)]
    return items

posX = lambda n: (2 * n) % 6
posW = lambda n: (2 * n + 1) % 6
posK = lambda j: 2 if j == 0 else (19 + 2 * j) % 6
posV = lambda j: 5 if j == 7 else (22 + 2 * j) % 6

def q_group(n, G):
    st = SETS[G % 2]; out = []
    for qb in range(3):
        for k in range(3):
            db = 3 * G + k
            for ks in range(2):
                d = vr(QACC(db, qb))
                c = '0' if (n == 0 and ks == 0) else d
                out.append(mfma(d, ar(st + 4 * (2 * k + ks)), ar(XF(qb, ks)), c))
    return out
def q_group_reads(n, G):
    st = SETS[G % 2]; out = []
    for k in range(3):
        for ks in range(2):
            out += t_reads(posW(n), 3 * G + k, ks, st + 4 * (2 * k + ks))
    return out

def qk_group(kb, setidx, cinit):
    st = SETS[setidx]; out = []
    for qb in range(3):
        for s in range(6):
            d = vr(SREG(kb, qb))
            c = d if s else (vr(negm(qb)) if cinit else '0')
            out.append(mfma(d, ar(st + 4 * s), vr(QF(qb, s)), c))
    return out
def qk_group_reads(j, kb, setidx):
    return [k_read(posK(j), kb, s, SETS[setidx] + 4 * s) for s in range(6)]

def pv_group(j, G, setidx):
    st = SETS[setidx]; out = []
    for k in range(3):
        db = 3 * G + k
        for qb in range(3):
            for ks in range(2):
                d = ar(OACC(db, qb))
                c = '0' if (j == 0 and ks == 0) else d
                out.append(mfma(d, ar(st + 4 * (2 * k + ks)), vr(PREG(j % 2, ks, qb)), c))
    return out
def pv_group_reads(j, G, setidx):
    st = SETS[setidx]; out = []
    for k in range(3):
        for ks in range(2):
            out += t_reads(posV(j), 3 * G + k, ks, st + 4 * (2 * k + ks))
    return out

def need_set(k): return I('@need %s' % ar(SETS[k], 24))
def put_needs(sl, starts):
    for p, k in starts: sl.put(p - 1, need_set(k))

class TmpAlloc:
    def __init__(self): self.k = 0
    def get4(self):
        b = TMP[4 * (self.k % 2):4 * (self.k % 2) + 4]; self.k += 1
        return b

def sm_ops(tile, kb, qb, ta, sub=False):
    s = SREG(kb, qb); t = ta.get4(); par = tile % 2
    p = PREG(par, kb // 2, qb) + 2 * (kb % 2)
    ops = []
    if sub:
        for r in range(4): ops.append(I('v_add_f32 v%d, v%d, v%d' % (s + r, s + r, negm(qb))))
    for r in range(4): ops.append(I('v_exp_f32 v%d, v%d' % (t[r], s + r)))
    if kb == 0:
        ops.append(I('v_add_f32 v%d, v%d, v%d' % (vT[qb], t[0], t[1])))
    else:
        ops.append(I('v_add_f32 v%d, v%d, v%d' % (vT[qb], vT[qb], t[0])))
        ops.append(I('v_add_f32 v%d, v%d, v%d' % (vT[qb], vT[qb], t[1])))
    ops.append(I('v_cvt_pk_bf16_f32 v%d, v%d, v%d' % (p, t[0], t[1])))
    ops.append(I('v_add_f32 v%d, v%d, v%d' % (vT[qb], vT[qb], t[2])))
    ops.append(I('v_add_f32 v%d, v%d, v%d' % (vT[qb], vT[qb], t[3])))
    ops.append(I('v_cvt_pk_bf16_f32 v%d, v%d, v%d' % (p + 1, t[2], t[3])))
    return ops

def xlane(op, m, tmp):
    return [I('v_mov_b32 v%d, v%d' % (tmp, m)),
            I('v_permlane32_swap_b32 v%d, v%d' % (tmp, m)),
            I('%s v%d, v%d, v%d' % (op, m, m, tmp)),
            I('v_mov_b32 v%d, v%d' % (tmp, m)),
            I('v_permlane16_swap_b32 v%d, v%d' % (tmp, m)),
            I('%s v%d, v%d, v%d' % (op, m, m, tmp))]

def check_ops(tile):
    ops = [I('v_max3_f32 v%d, v%d, v%d, v%d' % (1, vT[0], vT[1], vT[2])),
           I('v_cmp_lt_f32 vcc, s%d, v%d' % (sThr, 1)),
           I('s_cbranch_vccnz L_stub_%d' % tile),
           I('L_ret_%d:' % tile)]
    for qb in range(3):
        if tile == 0: ops.append(I('v_mov_b32 v%d, v%d' % (vL[qb], vT[qb])))
        else: ops.append(I('v_add_f32 v%d, v%d, v%d' % (vL[qb], vL[qb], vT[qb])))
    return ops

def step_head(vm_n):
    return [I('s_waitcnt vmcnt(%d)' % vm_n), I('s_waitcnt lgkmcnt(0)'), I('s_barrier')]

def conv_frag(f):
    src = R + 8 * f; dst = R + 4 * f; o = []
    for k in range(4):
        o.append(I('v_pk_mul_f32 %s, %s, %s' % (vr(src + 2 * k, 2), vr(src + 2 * k, 2), sr(sScale, 2))))
    for k in range(4):
        o.append(I('v_cvt_pk_bf16_f32 v%d, v%d, v%d' % (dst + k, src + 2 * k, src + 2 * k + 1)))
    o.append(I('v_permlane32_swap_b32 v%d, v%d' % (dst, dst + 2)))
    o.append(I('v_permlane32_swap_b32 v%d, v%d' % (dst + 1, dst + 3)))
    o.append(I('v_permlane16_swap_b32 v%d, v%d' % (dst, dst + 2)))
    o.append(I('v_permlane16_swap_b32 v%d, v%d' % (dst + 1, dst + 3)))
    return o

class VM:
    def __init__(self): self.q = []
    def issue(self, items):
        for it in items:
            for x in (it if isinstance(it, list) else [it]):
                if x.kind in ('dma', 'vload', 'vstore'): self.q.append(x.tag)
    def need(self, tags):
        last = -1
        for k, t in enumerate(self.q):
            if t in tags: last = k
        assert last >= 0, tags
        n = len(self.q) - 1 - last
        self.q = self.q[last + 1:]
        return n

def issue_plan(step):
    k, n = step
    if k == 'Q':
        if n <= 7: return [('X', n + 2, posX(n + 2)), ('W', n + 2, posW(n + 2))]
        if n == 8: return [('K', 0, posK(0))]
        return [('K', 1, posK(1)), ('V', 0, posV(0))]
    if k == 'P': return [('K', 2, posK(2)), ('V', 1, posV(1))]
    if n <= 4: return [('K', n + 3, posK(n + 3)), ('V', n + 2, posV(n + 2))]
    if n == 5: return [('V', 7, posV(7))]
    return [('X', n - 6, posX(n - 6)), ('W', n - 6, posW(n - 6))]
def need_plan(step):
    k, n = step
    if k == 'Q': return [('X', n), ('W', n)]
    if k == 'P': return [('K', 0)]
    if n <= 6: return [('K', n + 1), ('V', n)]
    return [('V', 7)]

def dma_items(cfg, step):
    items = []
    for ch, (typ, idx, pos) in enumerate(issue_plan(step)):
        items += dma_slot(cfg, typ, idx, pos, ch)
    return items

def gen_q_step(cfg, n, vm):
    out = step_head(vm.need(need_plan(('Q', n))))
    pre = []
    if n == 8:
        pre += [I('s_cmp_eq_u32 s%d, 0' % sHead), I('s_cselect_b32 s%d, 245760, 0' % (sX + 2)),
                I('s_cselect_b32 s%d, s%d, 0' % (sW + 2, sWsizeNext)),
                I('s_add_u32 s%d, s%d, 1536' % (sW, sW)), I('s_addc_u32 s%d, s%d, 0' % (sW + 1, sW + 1))]
    mf = []
    lag = n > 0
    if lag: mf += q_group(n - 1, 3)
    o = len(mf)
    for G in range(3): mf += q_group(n, G)
    sl = Slots(len(mf))
    xr = [[x_read(posX(n), qb, ks) for ks in range(2)] for qb in range(3)]
    g0 = q_group_reads(n, 0)
    if lag:
        for qb in range(3):
            sl.put(6 * qb + 5, xr[qb][0]); sl.put(min(6 * qb + 6, 17), xr[qb][1])
        sl.spread(g0, 0, 11)
    else:
        pre += xr[0] + g0[:4] + xr[1] + g0[4:] + xr[2]
    sl.spread(q_group_reads(n, 1), o + 0, o + 11)
    sl.spread(q_group_reads(n, 2), o + 18, o + 29)
    sl.spread(q_group_reads(n, 3), o + 36, o + 47)
    d = dma_items(cfg, ('Q', n)); vm.issue(d)
    sl.spread(d, 1, len(mf) - 26)
    put_needs(sl, ([(0, 1)] if lag else []) + [(o, 0), (o + 18, 1), (o + 36, 0)])
    return out + pre + merge(mf, sl.fills)

def gen_p_step(cfg, vm):
    out = step_head(vm.need(need_plan(('P', 0))))
    mf = q_group(9, 3)
    sl = Slots(18)
    sl.spread(qk_group_reads(0, 0, 0), 0, 10)
    d = dma_items(cfg, ('P', 0)); vm.issue(d)
    sl.spread(d, 1, 17)
    conv = []
    for f in range(12): conv += [(2, x) for x in conv_frag(f)]
    sl.flow(conv, 17)
    put_needs(sl, [(0, 1)])
    out += merge(mf, sl.fills)
    for f in range(12, 18): out += conv_frag(f)
    mf = qk_group(0, 0, False) + qk_group(1, 1, False) + qk_group(2, 0, True) + qk_group(3, 1, True)
    sl = Slots(72)
    sl.spread(qk_group_reads(0, 1, 1), 0, 10)
    sl.spread(qk_group_reads(0, 2, 0), 18, 28)
    sl.spread(qk_group_reads(0, 3, 1), 36, 46)
    ops = []
    for qb in range(3):
        s = SREG(0, qb); m = TMP[2 * qb]; tmp = TMP[2 * qb + 1]; e = 6 * qb + 5 + 4
        seq = [I('v_max3_f32 v%d, v%d, v%d, v%d' % (m, s, s + 1, s + 2)), I('v_max_f32 v%d, v%d, v%d' % (m, m, s + 3))]
        seq += xlane('v_max_f32', m, tmp)
        seq += [I('v_sub_f32 v%d, 0, v%d' % (negm(qb) + r, m)) for r in range(4)]
        ops += [(e, x) for x in seq]
    sl.flow(ops, 33, 9)
    ta = TmpAlloc(); ops = []
    for kb in range(4):
        for qb in range(3):
            e = max(18 * kb + 6 * qb + 5 + 4, 34)
            ops += [(min(e, 71), x) for x in sm_ops(0, kb, qb, ta, sub=(kb < 2))]
    sl.flow(ops, 71, 34)
    put_needs(sl, [(0, 0), (18, 1), (36, 0), (54, 1)])
    out += merge(mf, sl.fills)
    return out

def gen_a_step(cfg, j, vm):
    out = step_head(vm.need(need_plan(('A', j))))
    d = dma_items(cfg, ('A', j)); vm.issue(d)
    lag = j > 0
    last = j == 7
    if not last:
        first_reads = qk_group_reads(j + 1, 0, 0)
    else:
        first_reads = pv_group_reads(7, 0, 0)
    if lag:
        mf = pv_group(j - 1, 3, 1)
        sl = Slots(18)
        sl.spread(first_reads, 0, 11)
        sl.spread(d[:8], 1, 17)
        put_needs(sl, [(0, 1)])
        out += merge(mf, sl.fills)
        drest = d[8:]
    else:
        out += first_reads
        drest = d
    out += check_ops(j)
    if not last:
        mf = []
        for kb in range(4): mf += qk_group(kb, kb % 2, True)
        for G in range(3): mf += pv_group(j, G, G % 2)
        sl = Slots(len(mf))
        for kb in range(1, 4): sl.spread(qk_group_reads(j + 1, kb, kb % 2), 18 * (kb - 1), 18 * (kb - 1) + 10)
        sl.spread(pv_group_reads(j, 0, 0), 54, 54 + 11)
        sl.spread(pv_group_reads(j, 1, 1), 72, 72 + 11)
        sl.spread(pv_group_reads(j, 2, 0), 90, 90 + 11)
        sl.spread(pv_group_reads(j, 3, 1), 108, 108 + 11)
        if drest: sl.spread(drest, 0, 15)
        ta = TmpAlloc(); ops = []
        for kb in range(4):
            for qb in range(3):
                e = 18 * kb + 6 * qb + 5 + 4
                ops += [(e, x) for x in sm_ops(j + 1, kb, qb, ta)]
        sl.flow(ops, len(mf) - 1, 9)
        put_needs(sl, [(18 * g, g % 2) for g in range(7)])
        out += merge(mf, sl.fills)
    else:
        mf = []
        for G in range(4): mf += pv_group(7, G, G % 2)
        sl = Slots(len(mf))
        for G in range(1, 4): sl.spread(pv_group_reads(7, G, G % 2), 18 * (G - 1), 18 * (G - 1) + 11)
        if drest: sl.spread(drest, 0, 15)
        ops = []
        for qb in range(3):
            seq = xlane('v_add_f32', vL[qb], TMP[qb]) + [I('v_rcp_f32 v%d, v%d' % (vRcp[qb], vL[qb]))]
            ops += [(2, x) for x in seq]
        sl.flow(ops, len(mf) - 1, 2)
        put_needs(sl, [(18 * g, g % 2) for g in range(4)])
        out += merge(mf, sl.fills)
    return out

def gen_epilogue(cfg, vm):
    out = []
    buf = [P0, P0 + 12]
    k = 0
    for s in range(6):
        out.append(I('s_add_u32 s%d, s%d, %d' % (sOffA, sOoff, s * 6144)))
        for qb in range(3):
            b = S0 + 8 * (k % 4); k += 1
            for h in range(2):
                for r in range(4):
                    out.append(I('v_accvgpr_read_b32 v%d, a%d' % (b + 4 * h + r, OACC(2 * s + h, qb) + r)))
            for q in range(4):
                out.append(I('v_pk_mul_f32 %s, %s, %s op_sel_hi:[1,0]' % (vr(b + 2 * q, 2), vr(b + 2 * q, 2), vr(vRcp[qb] & ~1, 2)))
                           if False else None)
                out.pop()
            for q in range(8):
                out.append(I('v_mul_f32 v%d, v%d, v%d' % (b + q, b + q, vRcp[qb])))
            for q in range(4):
                out.append(I('v_cvt_pk_bf16_f32 v%d, v%d, v%d' % (b + q, b + 2 * q, b + 2 * q + 1)))
            st = I('buffer_store_dwordx4 %s, v%d, %s, s%d offen offset:%d%s' % (vr(b), vOst, sr(sO), sOffA, 1024 * qb, (' ' + cfg.ntO) if cfg.ntO else ''), tag=('O', 0))
            out.append(st); vm.issue([st])
    out += [I('s_add_u32 s%d, s%d, 786432' % (sK, sK)), I('s_addc_u32 s%d, s%d, 0' % (sK + 1, sK + 1)),
            I('s_add_u32 s%d, s%d, 786432' % (sV, sV)), I('s_addc_u32 s%d, s%d, 0' % (sV + 1, sV + 1)),
            I('s_add_u32 s%d, s%d, %d' % (sOoff, sOoff, 4 * 36864)),
            I('s_add_u32 s%d, s%d, 1' % (sHead, sHead))]
    return out

def gen_slow(par):
    o = [I('L_slow_%d:' % par), I('s_nop 15')]
    m, tmp, al = 1, 2, 3
    for qb in range(3):
        s = [SREG(kb, qb) + r for kb in range(4) for r in range(4)]
        o.append(I('v_max3_f32 v%d, v%d, v%d, v%d' % (m, s[0], s[1], s[2])))
        for k in range(3, 15, 2):
            o.append(I('v_max3_f32 v%d, v%d, v%d, v%d' % (m, m, s[k], s[k + 1])))
        o.append(I('v_max_f32 v%d, v%d, v%d' % (m, m, s[15])))
        o += xlane('v_max_f32', m, tmp)
        o.append(I('v_max_f32 v%d, 0, v%d' % (m, m)))
        o.append(I('v_sub_f32 v%d, 0, v%d' % (al, m)))
        o.append(I('v_exp_f32 v%d, v%d' % (al, al)))
        o.append(I('s_nop 0'))
        o.append(I('v_mul_f32 v%d, v%d, v%d' % (vL[qb], vL[qb], al)))
        for r in range(4): o.append(I('v_sub_f32 v%d, v%d, v%d' % (negm(qb) + r, negm(qb) + r, m)))
        for x in s: o.append(I('v_sub_f32 v%d, v%d, v%d' % (x, x, m)))
        for db in range(12):
            for r in range(4):
                o.append(I('v_accvgpr_read_b32 v%d, a%d' % (4 + r, OACC(db, qb) + r)))
            for r in range(4): o.append(I('v_mul_f32 v%d, v%d, v%d' % (4 + r, 4 + r, al)))
            for r in range(4):
                o.append(I('v_accvgpr_write_b32 a%d, v%d' % (OACC(db, qb) + r, 4 + r)))
    ta = TmpAlloc()
    for kb in range(4):
        for qb in range(3): o += sm_ops(par, kb, qb, ta)
    o += [I('s_nop 7'), I('s_setpc_b64 %s' % sr(sRet, 2))]
    return o

def gen_prologue(cfg, name):
    o = []; a = lambda t, tag=None: o.append(I(t, tag))
    a('s_cmp_ge_u32 s2, 256'); a('s_cbranch_scc1 L_%s_exit' % name)
    a('s_load_dwordx8 s[48:55], s[0:1], 0')
    a('s_load_dwordx2 s[56:57], s[0:1], 32')
    a('s_load_dwordx2 s[58:59], s[0:1], 56')
    a('v_lshrrev_b32 v1, 6, v0'); a('v_and_b32 v0, 63, v0'); a('v_readfirstlane_b32 s%d, v1' % sWave)
    a('s_and_b32 s%d, s2, 7' % sT0); a('s_lshr_b32 s%d, s2, 3' % sT1)
    a('s_lshr_b32 s33, s%d, 2' % sT0); a('s_lshl_b32 s33, s33, 3'); a('s_and_b32 s%d, s%d, 7' % (sT2, sT1)); a('s_add_u32 s33, s33, s%d' % sT2)
    a('s_and_b32 s34, s%d, 3' % sT0); a('s_lshl_b32 s34, s34, 3'); a('s_lshr_b32 s%d, s%d, 3' % (sT2, sT1)); a('s_add_u32 s34, s34, s%d' % sT2)
    a('s_mul_i32 s%d, s%d, 6144' % (sWbase, sWave))
    a('v_lshrrev_b32 v2, 3, v0'); a('v_and_b32 v3, 7, v0'); a('v_lshrrev_b32 v4, 4, v0'); a('v_and_b32 v5, 15, v0')
    a('v_mul_u32_u24 v6, 48, v1'); a('v_add_u32 v6, v6, v2')
    for i6 in range(6):
        imm = 1024 * (i6 % 4)
        a('v_add_u32 v7, %d, v6' % (8 * i6))
        a('v_and_b32 v33, 2, v2'); a('v_xor_b32 v33, v33, v3')
        if i6 & 1: a('v_xor_b32 v33, 4, v33')
        a('v_mul_u32_u24 v34, 1280, v7'); a('v_lshl_add_u32 v%d, v33, 4, v34' % voX[i6])
        if imm: a('v_subrev_u32 v%d, %d, v%d' % (voX[i6], imm, voX[i6]))
        a('v_mul_u32_u24 v33, 171, v7'); a('v_lshrrev_b32 v33, 9, v33')
        a('v_mul_u32_u24 v34, 3, v33'); a('v_sub_u32 v34, v7, v34'); a('v_lshlrev_b32 v34, 3, v34')
        a('v_and_b32 v35, 2, v33'); a('v_xor_b32 v35, v35, v3')
        a('v_lshrrev_b32 v36, 1, v33'); a('v_and_b32 v36, 4, v36'); a('v_xor_b32 v36, v36, v35'); a('v_add_u32 v36, v36, v34')
        a('v_lshrrev_b32 v37, 2, v33'); a('v_and_b32 v37, 4, v37'); a('v_xor_b32 v37, v37, v35'); a('v_add_u32 v37, v37, v34')
        a('v_lshlrev_b32 v36, 4, v36'); a('v_lshlrev_b32 v37, 4, v37')
        if imm:
            a('v_subrev_u32 v36, %d, v36' % imm); a('v_subrev_u32 v37, %d, v37' % imm)
        a('v_mul_u32_u24 v34, 12288, v33'); a('v_add_u32 v%d, v34, v36' % voW[i6])
        a('v_mul_u32_u24 v34, 384, v33'); a('v_add_u32 v%d, v34, v36' % voV[i6]); a('v_add_u32 v%d, v34, v37' % voK[i6])
    a('s_waitcnt lgkmcnt(0)')
    def srd(s, lo, hi, off_s, size):
        if off_s is None:
            a('s_mov_b32 s%d, s%d' % (s, lo)); a('s_mov_b32 s%d, s%d' % (s + 1, hi))
        else:
            a('s_add_u32 s%d, s%d, s%d' % (s, lo, off_s)); a('s_addc_u32 s%d, s%d, 0' % (s + 1, hi))
        a('s_mov_b32 s%d, %s' % (s + 2, size)); a('s_mov_b32 s%d, 0x20000' % (s + 3))
    a('s_mul_i32 s%d, s33, 245760' % sT0); srd(sX, 48, 49, sT0, '245760')
    a('s_mul_i32 s%d, s34, 384' % sT0); a('s_sub_u32 s%d, 7864320, s%d' % (sT1, sT0)); srd(sW, 54, 55, sT0, 's%d' % sT1)
    a('s_sub_u32 s%d, s%d, 1536' % (sWsizeNext, sT1))
    vm = VM()
    def issue(items):
        for it in items:
            for x in (it if isinstance(it, list) else [it]): o.append(x)
        vm.issue(items)
    d0 = dma_slot(cfg, 'X', 0, posX(0), 0) + dma_slot(cfg, 'W', 0, posW(0), 1)
    issue(d0)
    a('s_lshl_b32 s%d, s33, 5' % sT0); a('s_add_u32 s%d, s%d, s34' % (sT0, sT0)); a('s_mul_i32 s%d, s%d, 196608' % (sT0, sT0))
    srd(sK, 50, 51, sT0, '196608'); srd(sV, 52, 53, sT0, '196608')
    a('s_mul_i32 s%d, s33, 2359296' % sT0); srd(sO, 58, 59, sT0, '2359296')
    a('s_mul_i32 s%d, s34, 36864' % sOoff)
    a('v_lshlrev_b32 v7, 4, v0')
    if cfg.job:
        a('s_cmp_ge_u32 s2, 192'); a('s_cbranch_scc1 L_nojob0')
        a('s_mul_i32 s%d, s2, 40960' % sT0); srd(sTmp, 56, 57, sT0, '40960')
        a('s_mul_i32 s%d, s%d, 10240' % (sT2, sWave))
        for i in range(10):
            if i % 4 == 0:
                a('s_add_u32 m0, s%d, %d' % (sT2, 98304 + 4096 * (i // 4))); a('s_add_u32 s%d, s%d, %d' % (sT3, sT2, 4096 * (i // 4)))
            a('buffer_load_dwordx4 v7, %s, s%d offen offset:%d lds' % (sr(sTmp), sT3, 1024 * (i % 4)))
        a('L_nojob0:')
    a('s_getpc_b64 s[60:61]'); a('L_pc:')
    a('s_sub_u32 s60, s60, (L_pc-%s)' % name); a('s_subb_u32 s61, s61, 0')
    a('s_mov_b32 s62, (L_%s_end-%s)' % (name, name)); a('s_mov_b32 s63, 0x20000')
    a('s_lshr_b32 s%d, s2, 3' % sT0); a('s_lshl_b32 s%d, s%d, 12' % (sT0, sT0)); a('s_lshl_b32 s%d, s%d, 10' % (sT1, sWave)); a('s_add_u32 s%d, s%d, s%d' % (sT0, sT0, sT1))
    a('buffer_load_dwordx4 v[40:43], v7, s[60:63], s%d offen' % sT0)
    issue(dma_slot(cfg, 'X', 1, posX(1), 0) + dma_slot(cfg, 'W', 1, posW(1), 1))
    a('v_and_b32 v33, 2, v5'); a('v_lshrrev_b32 v34, 1, v5'); a('v_and_b32 v34, 4, v34'); a('v_or_b32 v33, v33, v34')
    a('v_mul_u32_u24 v34, 48, v1'); a('v_add_u32 v34, v34, v5'); a('v_lshlrev_b32 v34, 7, v34')
    a('v_lshrrev_b32 v35, 2, v5'); a('v_lshlrev_b32 v36, 3, v35'); a('v_and_b32 v37, 3, v5'); a('v_add_u32 v36, v36, v37'); a('v_mul_u32_u24 v36, 384, v36')
    for p in range(2):
        a('v_or_b32 v37, %d, v4' % (4 * p)); a('v_xor_b32 v37, v37, v33'); a('v_lshlrev_b32 v37, 4, v37')
        for b in range(3):
            a('v_add_u32 v%d, v37, v34' % vaX(b, p)); a('v_add_u32 v%d, v37, v36' % vaK(b, p))
            if b:
                a('v_add_u32 v%d, %d, v%d' % (vaX(b, p), 49152 * b, vaX(b, p))); a('v_add_u32 v%d, %d, v%d' % (vaK(b, p), 49152 * b, vaK(b, p)))
    a('v_lshlrev_b32 v36, 3, v4'); a('v_add_u32 v36, v36, v35'); a('v_mul_u32_u24 v36, 384, v36')
    a('v_and_b32 v37, 3, v5'); a('v_lshrrev_b32 v34, 1, v37'); a('v_lshlrev_b32 v34, 4, v34'); a('v_and_b32 v37, 1, v37'); a('v_lshlrev_b32 v37, 3, v37')
    a('v_add3_u32 v36, v36, v34, v37')
    a('v_and_b32 v33, 2, v35'); a('v_and_b32 v34, 1, v4'); a('v_lshlrev_b32 v34, 2, v34'); a('v_or_b32 v33, v33, v34')
    for d4 in range(4):
        a('v_xor_b32 v34, %d, v33' % (2 * d4)); a('v_lshl_add_u32 v34, v34, 4, v36')
        for b in range(3):
            if b: a('v_add_u32 v%d, %d, v34' % (vaT(b, d4), 49152 * b))
            else: a('v_mov_b32 v%d, v34' % vaT(b, d4))
    a('v_lshrrev_b32 v33, 1, v1'); a('s_mov_b32 s%d, 1179648' % sT0); a('v_mul_lo_u32 v33, v33, s%d' % sT0)
    a('v_and_b32 v34, 1, v1'); a('v_mul_u32_u24 v34, 3072, v34'); a('v_add3_u32 v%d, v33, v34, v7' % vOst)
    a('s_mov_b32 s%d, 0x3dd53b95' % sScale); a('s_mov_b32 s%d, 0x3dd53b95' % (sScale + 1))
    a('s_mov_b32 s%d, 0x4e800000' % sThr)
    a('s_mov_b32 s%d, 0' % sHead)
    if cfg.job:
        a('s_cmp_ge_u32 s2, 192'); a('s_cbranch_scc1 L_nojob1')
        a('s_waitcnt vmcnt(13)'); a('s_barrier')
        a('v_lshlrev_b32 v33, 2, v4'); a('v_lshrrev_b32 v34, 2, v5'); a('v_add_u32 v33, v33, v34'); a('v_mul_u32_u24 v33, 1280, v33')
        a('v_and_b32 v34, 3, v5'); a('v_lshlrev_b32 v34, 3, v34'); a('v_mul_u32_u24 v35, 320, v1'); a('v_add3_u32 v33, v33, v34, v35')
        a('v_add_u32 v33, 98304, v33')
        for f in range(10):
            a('ds_read_b64_tr_b16 %s, v33 offset:%d' % (vr(R + 4 * f, 2), 32 * f))
            a('ds_read_b64_tr_b16 %s, v33 offset:%d' % (vr(R + 4 * f + 2, 2), 32 * f + 20480))
        a('s_add_u32 s%d, s58, 0x2400000' % sTmp); a('s_addc_u32 s%d, s59, 0' % (sTmp + 1)); a('s_mov_b32 s%d, 7864320' % (sTmp + 2)); a('s_mov_b32 s%d, 0x20000' % (sTmp + 3))
        a('s_mul_i32 s%d, s%d, 384' % (sT0, sWave)); a('s_add_u32 s%d, s%d, s2' % (sT0, sT0)); a('s_mul_i32 s%d, s%d, 5120' % (sT0, sT0))
        a('s_add_u32 s%d, s%d, %d' % (sT1, sT0, 192 * 5120))
        a('v_add_u32 v34, 4096, v7')
        for f in range(10):
            so = sT0 if f < 5 else sT1; nbl = f % 5
            a('buffer_store_dwordx4 %s, %s, %s, s%d offen offset:%d' % (vr(R + 4 * f), 'v7' if nbl < 4 else 'v34', sr(sTmp), so, 1024 * nbl if nbl < 4 else 0))
        a('L_nojob1:')
    return o, vm

def build(cfg, name):
    pro, vm = gen_prologue(cfg, name)
    body = [I('L_head:')]
    for n in range(10): body += gen_q_step(cfg, n, vm)
    body += gen_p_step(cfg, vm)
    for j in range(8): body += gen_a_step(cfg, j, vm)
    body += gen_epilogue(cfg, vm)
    body += [I('s_cmp_lt_u32 s%d, 2' % sHead), I('s_cbranch_scc0 L_%s_exit' % name), I('s_nop 1'), I('s_branch L_head'), I('L_%s_exit:' % name), I('s_endpgm')]
    tail = []
    for t in range(8):
        tail += [I('L_stub_%d:' % t), I('s_call_b64 %s, L_slow_%d' % (sr(sRet, 2), t % 2)), I('s_branch L_ret_%d' % t)]
    tail += gen_slow(0) + gen_slow(1)
    prog = insert_lgkm_waits(pro + body)
    prog, n1 = pad_hazards(prog)
    tail, n2 = pad_hazards(tail)
    return prog + tail + [I('L_%s_end:' % name)], (n1, n2)

if __name__ == '__main__':
    cfg = Cfg()
    prog, pads = build(cfg, 'k1_kernel')
    from collections import Counter
    print(len(prog), pads, Counter(i.kind for i in prog))
```

```python
from ir import I, Slots, merge, insert_lgkm_waits, insert_vm_waits, pad_hazards
vr = lambda b, n=4: 'v[%d:%d]' % (b, b + n - 1)
ar = lambda b, n=4: 'a[%d:%d]' % (b, b + n - 1)
sr = lambda b, n=4: 's[%d:%d]' % (b, b + n - 1)
sO, sWo, sOut = 4, 8, 12
sWave, sOffO, sOffW, sCnt = 16, 17, 18, 19
ACC = lambda nb, qb: 4 * (6 * nb + qb)
BUF = [('v', 16), ('v', 104), ('a', 120)]
def fr(buf, k):
    t, b = BUF[buf]
    return '%s[%d:%d]' % (t, b + 4 * k, b + 4 * k + 3)
class Cfg2:
    ntO = ''
    ntW = ''
def loads(cfg, buf):
    o = []
    fo = (' ' + cfg.ntO) if cfg.ntO else ''; fw = (' ' + cfg.ntW) if cfg.ntW else ''
    def ld(k, srd, so, vlo, vhi, i, fl):
        v, imm = (vlo, 1024 * i) if i < 4 else (vhi, 1024 * (i - 4))
        return I('buffer_load_dwordx4 %s, v%d, %s, s%d offen offset:%d%s' % (fr(buf, k), v, sr(srd), so, imm, fl))
    wo0 = [ld(12 + i, sWo, sOffW, 1, 2, i, fw) for i in range(5)]
    wo1 = [ld(17 + i, sWo, sOffW, 5, 6, i, fw) for i in range(5)]
    o0 = [ld(i, sO, sOffO, 1, 2, i, fo) for i in range(6)]
    o1 = [ld(6 + i, sO, sOffO, 3, 4, i, fo) for i in range(6)]
    o = o0 + o1 + wo0 + wo1
    o.append([I('s_add_u32 s%d, s%d, %d' % (sOffO, sOffO, 2 * 6144)), I('s_add_u32 s%d, s%d, %d' % (sOffW, sOffW, 2 * 5120))])
    return o
def mfmas(buf):
    o = []
    for nb in range(5):
        for qb in range(6):
            for kk in range(2):
                d = ar(ACC(nb, qb))
                o.append(I('v_mfma_f32_16x16x32_bf16 %s, %s, %s, %s' % (d, fr(buf, 12 + 5 * kk + nb), fr(buf, 6 * kk + qb), d)))
    return o
def phase(cfg, buf, do_loads, wait):
    mf = mfmas(buf); sl = Slots(len(mf))
    if do_loads: sl.spread(loads(cfg, (buf + 2) % 3), 0, 50)
    return [I('s_waitcnt vmcnt(%d)' % wait)] + merge(mf, sl.fills)

def build(cfg, name):
    o = []; a = lambda t: o.append(I(t))
    a('s_cmp_ge_u32 s2, 256'); a('s_cbranch_scc1 L_%s_exit' % name)
    a('s_load_dwordx2 s[20:21], s[0:1], 40')
    a('s_load_dwordx2 s[22:23], s[0:1], 56')
    a('v_lshrrev_b32 v7, 6, v0'); a('v_and_b32 v0, 63, v0'); a('v_readfirstlane_b32 s%d, v7' % sWave)
    a('s_and_b32 s24, s2, 7'); a('s_lshr_b32 s25, s2, 3')
    a('s_lshl_b32 s26, s24, 2'); a('s_lshr_b32 s27, s25, 3'); a('s_add_u32 s26, s26, s27')
    a('s_and_b32 s27, s25, 7')
    a('v_lshlrev_b32 v1, 4, v0'); a('v_add_u32 v2, 4096, v1'); a('v_add_u32 v3, 6144, v1'); a('v_add_u32 v4, 10240, v1')
    a('v_add_u32 v5, 5120, v1'); a('v_add_u32 v6, 9216, v1')
    a('s_mul_i32 s%d, s%d, %d' % (sOffO, sWave, 48 * 6144)); a('s_mul_i32 s%d, s%d, %d' % (sOffW, sWave, 48 * 5120))
    a('s_waitcnt lgkmcnt(0)')
    a('s_mul_i32 s28, s26, %d' % (192 * 6144)); a('s_add_u32 s%d, s22, s28' % sO); a('s_addc_u32 s%d, s23, 0' % (sO + 1))
    a('s_mov_b32 s%d, %d' % (sO + 2, 192 * 6144)); a('s_mov_b32 s%d, 0x20000' % (sO + 3))
    a('s_mul_i32 s28, s27, %d' % (192 * 5120)); a('s_add_u32 s28, s28, 0x2400000'); a('s_add_u32 s%d, s22, s28' % sWo); a('s_addc_u32 s%d, s23, 0' % (sWo + 1))
    a('s_mov_b32 s%d, %d' % (sWo + 2, 192 * 5120)); a('s_mov_b32 s%d, 0x20000' % (sWo + 3))
    for b in range(2):
        for it in loads(cfg, b):
            o.extend(it if isinstance(it, list) else [it])
    a('s_getpc_b64 s[60:61]'); a('L_pc2:')
    a('s_sub_u32 s60, s60, (L_pc2-%s)' % name); a('s_subb_u32 s61, s61, 0')
    a('s_mov_b32 s62, (L_%s_end-%s)' % (name, name)); a('s_mov_b32 s63, 0x20000')
    a('s_lshl_b32 s28, s25, 12'); a('s_lshl_b32 s29, s%d, 10' % sWave); a('s_add_u32 s28, s28, s29')
    a('buffer_load_dwordx4 v[8:11], v1, s[60:63], s28 offen')
    a('s_mul_i32 s28, s26, %d' % (96 * 1280)); a('s_mul_i32 s29, s27, 160'); a('s_add_u32 s30, s28, s29')
    a('s_mov_b32 s%d, s20' % sOut); a('s_mov_b32 s%d, s21' % (sOut + 1)); a('s_mov_b32 s%d, 3932160' % (sOut + 2)); a('s_mov_b32 s%d, 0x20000' % (sOut + 3))
    for i in range(120): a('v_accvgpr_write_b32 a%d, 0' % i)
    a('s_mov_b32 s%d, 7' % sCnt)
    a('L_k2loop:')
    for ph in range(3): o += phase(cfg, ph, True, 22)
    a('s_sub_u32 s%d, s%d, 1' % (sCnt, sCnt)); a('s_cmp_lg_u32 s%d, 0' % sCnt); a('s_cbranch_scc1 L_k2loop')
    o += phase(cfg, 0, True, 22)
    o += phase(cfg, 1, False, 22)
    o += phase(cfg, 2, False, 0)
    a('s_mul_i32 s28, s%d, 30720' % sWave); a('v_add_u32 v2, s28, v1')
    for t in range(30):
        a('ds_write_b128 v2, %s offset:%d' % (ar(4 * t), 1024 * t))
    a('s_waitcnt lgkmcnt(0)'); a('s_barrier')
    a('v_lshrrev_b32 v3, 4, v0'); a('v_and_b32 v4, 15, v0'); a('v_mul_u32_u24 v4, 1280, v4'); a('v_lshl_add_u32 v4, v3, 3, v4')
    a('s_lshl_b32 s28, s%d, 10' % sWave); a('v_add_u32 v2, s28, v1'); a('v_add_u32 v3, 61440, v2')
    for m in range(8):
        if m == 7:
            a('s_cmp_ge_u32 s%d, 2' % sWave); a('s_cbranch_scc1 L_k2done')
        b = 16 + 16 * (m % 2)
        for w in range(4):
            a('ds_read_b128 %s, v%d offset:%d' % (vr(b + 4 * w), 2 if w < 2 else 3, 4096 * m + 30720 * (w % 2)))
        a('s_add_u32 s28, s%d, %d' % (sWave, 4 * m)); a('s_mul_i32 s29, s28, 43'); a('s_lshr_b32 s29, s29, 8')
        a('s_mul_i32 s31, s29, 6'); a('s_sub_u32 s28, s28, s31'); a('s_mul_i32 s28, s28, %d' % (16 * 1280)); a('s_lshl_b32 s29, s29, 5')
        a('s_add_u32 s28, s28, s29'); a('s_add_u32 s28, s28, s30')
        for r in range(4):
            a('v_add_f32 v%d, v%d, v%d' % (b + r, b + r, b + 4 + r)); a('v_add_f32 v%d, v%d, v%d' % (b + 8 + r, b + 8 + r, b + 12 + r))
        for r in range(4): a('v_add_f32 v%d, v%d, v%d' % (b + r, b + r, b + 8 + r))
        a('v_cvt_pk_bf16_f32 v%d, v%d, v%d' % (b, b, b + 1)); a('v_cvt_pk_bf16_f32 v%d, v%d, v%d' % (b + 1, b + 2, b + 3))
        a('buffer_store_dwordx2 %s, v4, %s, s28 offen' % (vr(b, 2), sr(sOut)))
    a('L_k2done:')
    a('L_%s_exit:' % name); a('s_endpgm')
    prog = insert_lgkm_waits(o)
    prog, n = pad_hazards(prog)
    return prog + [I('L_%s_end:' % name)], n

if __name__ == '__main__':
    prog, pads = build(Cfg2(), 'k2_kernel')
    from collections import Counter
    print(len(prog), pads, Counter(i.kind for i in prog))
```
